```python
import torch

def _softmax(x, axis=-1):
    return torch.softmax(x, dim=axis)
def _gelu(x):
    return torch.nn.functional.gelu(x, approximate="tanh")
def _silu(x):
    return torch.nn.functional.silu(x)
def _sigmoid(x):
    return torch.sigmoid(x)
def _layernorm(x, axis=-1, eps=1e-5):
    m = x.mean(dim=axis, keepdim=True)
    v = x.var(dim=axis, keepdim=True, unbiased=False)
    return (x - m) / torch.sqrt(v + eps)
def _scatter_add(tgt, idx, src, axis=0):
    return tgt.clone().index_add_(axis, idx, src)
def _segment_sum(src, seg, n):
    out = torch.zeros((n,) + src.shape[1:], dtype=src.dtype)
    return out.index_add_(0, seg, src)
def _pad(x, pw):
    flat = tuple(v for pair in reversed(pw) for v in pair)
    return torch.nn.functional.pad(x, flat)

kernel_name = 'gated_mix__spectral_fnet__linear_kernel_hedgehog__prompt'

def setup_inputs():

    _w = (lambda a: (lambda t: t.to(torch.bfloat16) if t.is_floating_point() else t)(torch.as_tensor(a)))
    def _A_setup():
        B, S, D = 1, 2048, 576
        ns = torch.arange(S)[:, None] * torch.arange(S)[None, :]
        nd = torch.arange(D)[:, None] * torch.arange(D)[None, :]
        Ws_re = torch.cos(-2.0 * torch.pi * ns / S).to(float)
        Ws_im = torch.sin(-2.0 * torch.pi * ns / S).to(float)
        Wd_re = torch.cos(-2.0 * torch.pi * nd / D).to(float)
        Wd_im = torch.sin(-2.0 * torch.pi * nd / D).to(float)
        return {
            "x": _w((lambda *s: torch.randn(*s, dtype=torch.bfloat16) * 0.1)(B, S, D)),
            "dft_seq_re": _w(Ws_re),
            "dft_seq_im": _w(Ws_im),
            "dft_hid_re": _w(Wd_re),
            "dft_hid_im": _w(Wd_im),
        }
    _A_in = _A_setup()

    def _B_setup():
        B, S, D, H = 1, 2048, 576, 32
        Dh = D // H
        return {
            "x": _w((lambda *s: torch.randn(*s, dtype=torch.bfloat16) * 0.1)(B, S, D)),
            "wqkv": _w((lambda *s: torch.randn(*s, dtype=torch.bfloat16) * 1.6)(D, 3 * D)),
            "w_phi": _w((lambda *s: torch.randn(*s, dtype=torch.bfloat16) * 1.6)(H, Dh, Dh) * (Dh ** -0.5)),
            "wo": _w((lambda *s: torch.randn(*s, dtype=torch.bfloat16) * 1.6)(D, D)),
        }
    _B_in = _B_setup()

    return {
        "A_x": _A_in["x"],
        "A_dft_seq_re": _A_in["dft_seq_re"],
        "A_dft_seq_im": _A_in["dft_seq_im"],
        "A_dft_hid_re": _A_in["dft_hid_re"],
        "A_dft_hid_im": _A_in["dft_hid_im"],
        "B_x": _B_in["x"],
        "B_wqkv": _B_in["wqkv"],
        "B_w_phi": _B_in["w_phi"],
        "B_wo": _B_in["wo"],
        "gate_w": _w((lambda *s: torch.randn(*s, dtype=torch.bfloat16) * 0.1)(576) * 16.0),
    }

def reference(A_x, A_dft_seq_re, A_dft_seq_im, A_dft_hid_re, A_dft_hid_im, B_x, B_wqkv, B_w_phi, B_wo, gate_w):
    def _A_ref(x, dft_seq_re, dft_seq_im, dft_hid_re, dft_hid_im):
        a = torch.einsum("bsd,ed->bse", x, dft_hid_re)
        b = torch.einsum("bsd,ed->bse", x, dft_hid_im)
        y = torch.einsum("ts,bse->bte", dft_seq_re, a) - torch.einsum("ts,bse->bte", dft_seq_im, b)
        return y

    def _B_ref(x, wqkv, w_phi, wo):
        B, S, D = x.shape
        H = 32; Dh = D // H
        qkv = (lambda x, *d: x.permute(*d))((x @ wqkv).reshape(B, S, 3, H, Dh), 2, 0, 3, 1, 4)
        q, k, v = qkv[0], qkv[1], qkv[2]
        pq = torch.einsum("bhsd,hdf->bhsf", q, w_phi)
        pk = torch.einsum("bhsd,hdf->bhsf", k, w_phi)
        phi_q = torch.concatenate([_softmax(pq, axis=-1), _softmax(-pq, axis=-1)], axis=-1)
        phi_k = torch.concatenate([_softmax(pk, axis=-1), _softmax(-pk, axis=-1)], axis=-1)
        kv = torch.einsum("bhsf,bhsd->bhfd", phi_k, v)
        z  = torch.einsum("bhsf->bhf", phi_k)
        num = torch.einsum("bhqf,bhfd->bhqd", phi_q, kv)
        den = torch.einsum("bhqf,bhf->bhq", phi_q, z)[..., None] + 1e-6
        o = num / den
        return (lambda x, *d: x.permute(*d))(o, 0, 2, 1, 3).reshape(B, S, D) @ wo

    x = A_x
    g = _sigmoid((x * gate_w).sum(-1, keepdims=True))
    a = _A_ref(x, A_dft_seq_re, A_dft_seq_im, A_dft_hid_re, A_dft_hid_im)
    b = _B_ref(x, B_wqkv, B_w_phi, B_wo)
    return g * a + (1 - g) * b
```

```python
import re

TRANS = ("v_exp_f32", "v_log_f32", "v_rcp_f32", "v_rsq_f32", "v_sqrt_f32", "v_sin_f32", "v_cos_f32")


def regs(tok):
    tok = tok.strip()
    tok = tok.lstrip("-")
    m = re.fullmatch(r"abs\((.*)\)", tok)
    if m:
        tok = m.group(1)
    m = re.fullmatch(r"([vs])(\d+)", tok)
    if m:
        return {(m.group(1), int(m.group(2)))}
    m = re.fullmatch(r"([vs])\[(\d+):(\d+)\]", tok)
    if m:
        return {(m.group(1), i) for i in range(int(m.group(2)), int(m.group(3)) + 1)}
    if tok == "vcc":
        return {("s", "vcc")}
    if tok in ("m0",):
        return {("s", "m0")}
    return set()


class I:
    def __init__(self, line):
        self.line = line
        s = line.split(";")[0].strip()
        self.label = s[:-1] if s.endswith(":") else None
        self.op = None
        self.w = set(); self.r = set(); self.c = set(); self.ab = set(); self.data = set()
        self.kind = "none"
        self.states = 0
        if self.label or not s or s.startswith("."):
            return
        parts = s.split(None, 1)
        op = self.op = parts[0]
        rest = parts[1] if len(parts) > 1 else ""
        ops = [t.strip() for t in rest.split(",")] if rest else []
        mods = ""
        if ops:
            last = ops[-1].split(None, 1)
            ops[-1] = last[0]
            mods = last[1] if len(last) > 1 else ""
        self.mods = mods
        self.states = 1
        R = [regs(t) for t in ops]
        u = lambda l: set().union(*l) if l else set()
        if op == "s_nop":
            self.kind = "nop"; self.states = int(ops[0], 0) + 1
        elif op.startswith("v_mfma"):
            self.kind = "mfma"; self.w = R[0]; self.ab = R[1] | R[2]; self.c = R[3]; self.r = self.ab | self.c
        elif op.startswith("v_"):
            self.kind = "valu"
            base = re.sub(r"_(e32|e64|dpp|sdwa)$", "", op)
            self.trans = base in TRANS
            self.dpp = op.endswith("_dpp") or "row_" in mods or "quad_perm" in mods
            self.perm = base.startswith("v_permlane")
            self.rl = base in ("v_readfirstlane_b32", "v_readlane_b32")
            if self.perm or base == "v_swap_b32":
                self.w = R[0] | R[1]; self.r = R[0] | R[1]
            elif base in ("v_add_co_u32", "v_addc_co_u32", "v_sub_co_u32"):
                self.w = R[0] | R[1]; self.r = u(R[2:])
            else:
                self.w = R[0]; self.r = u(R[1:])
                if base in ("v_fmac_f32", "v_writelane_b32") or self.dpp:
                    self.r |= R[0]
        elif op.startswith("buffer_") or op.startswith("global_"):
            self.kind = "vmem"
            self.lds = bool(re.search(r"\blds\b", mods)) or "_lds_" in op
            if "store" in op or "atomic" in op:
                self.r = u(R)
                d = R[0] if op.startswith("buffer_") else R[1]
                if op.endswith("x4") or op.endswith("x3"):
                    self.data = d
            elif self.lds:
                self.r = u(R) | {("s", "m0")}
            else:
                self.w = R[0]; self.r = u(R[1:])
        elif op.startswith("ds_"):
            self.kind = "ds"
            if "read" in op or "permute" in op or "rtn" in op or "swizzle" in op:
                self.w = R[0]; self.r = u(R[1:])
            else:
                self.r = u(R)
        elif op.startswith("s_"):
            self.kind = "salu"
            if op.startswith("s_cbranch") or op == "s_branch":
                self.kind = "branch"; self.target = ops[0]
            elif op.startswith("s_cmp") or op.startswith("s_bitcmp") or op in ("s_waitcnt", "s_barrier", "s_endpgm", "s_setprio", "s_sleep", "s_setpc_b64"):
                self.r = u(R)
            else:
                self.w = R[0]; self.r = u(R[1:])


def isv(s):
    return {x for x in s if x[0] == "v"}


def iss(s):
    return {x for x in s if x[0] == "s"}


def need(p, c):
    n = 0
    if p.kind == "valu":
        wv, ws = isv(p.w), iss(p.w)
        if c.kind == "mfma" and wv & c.r: n = max(n, 2)
        if c.kind == "valu":
            if (c.perm or c.dpp) and wv & c.r: n = max(n, 2)
            if c.rl and wv & c.r: n = max(n, 1)
            if p.trans and not c.trans and wv & c.r: n = max(n, 1)
            if ws & c.r: n = max(n, 4 if c.rl else 2)
        if c.kind in ("vmem", "ds") and p.trans and wv & c.r: n = max(n, 1)
        if c.kind == "vmem" and ws & c.r: n = max(n, 5)
    if p.kind == "mfma":
        big = "32x32" in p.op
        if c.kind == "mfma":
            if c.ab & p.w: n = max(n, 12 if big else 8)
            if c.c & p.w and c.c != p.w: n = max(n, 10 if big else 6)
            if c.w & p.w and c.c != p.w: n = max(n, 10 if big else 6)
        elif c.kind in ("valu", "vmem", "ds"):
            if (c.r | c.w) & p.w: n = max(n, 12 if big else 8)
            if c.kind == "valu" and c.w & p.c: n = max(n, 7 if big else 3)
    if p.kind == "salu" and ("s", "m0") in p.w and c.kind == "vmem" and c.lds: n = max(n, 1)
    if p.kind == "vmem" and p.data:
        if c.w & p.data: n = max(n, 2 if c.kind in ("valu", "mfma") else 1)
    return n


def pad(lines):
    ins = [I(l) for l in lines]
    W = 13
    added = 0
    def maps():
        labels = {x.label: k for k, x in enumerate(ins) if x.label}
        srcs = {}
        for k, x in enumerate(ins):
            if x.kind == "branch" and x.target in labels:
                srcs.setdefault(labels[x.target], []).append(k)
        return srcs
    changed = True
    while changed:
        changed = False
        srcs = maps()
        j = 0
        while j < len(ins):
            c = ins[j]
            if c.states == 0 or c.kind in ("nop", "salu", "branch"):
                j += 1
                continue
            short = 0
            stack = [(j - 1, 0)]
            seen = set()
            while stack:
                k, dist = stack.pop()
                while k >= 0 and dist < W:
                    if (k, dist) in seen:
                        break
                    seen.add((k, dist))
                    p = ins[k]
                    if p.label:
                        for b in srcs.get(k, []):
                            stack.append((b - 1, dist + 1))
                    elif p.op in ("s_branch", "s_endpgm", "s_setpc_b64"):
                        break
                    elif p.states:
                        short = max(short, need(p, c) - dist)
                        dist += p.states
                    k -= 1
            if short > 0:
                ins.insert(j, I(f"    s_nop {short - 1}"))
                added += 1
                changed = True
                srcs = maps()
                j += 1
            j += 1
    return [x.line for x in ins], added
```

```python
import struct, sys, os
sys.path.insert(0, os.path.dirname(os.path.abspath(__file__)))
from hz import pad

KN = "gated_mix__spectral_fnet__linear_kernel_hedgehog__prompt_kernel"
RS = 64 * 1152
F0, FZ, F1, F2 = 0x8000, 0x10000, 0x20000, 0x40000
WKG = 0x60000
WVG = WKG + 16 * 55296
WQG = WVG + 16 * 36864
WOG = WQG + 16 * 36864
PARTG = WOG + 8 * 82944
ZCG = PARTG + 256 * 3072
OG = ZCG + 256 * 9728
WSEND = OG + 128 * 18432
DBG = 0x900000
XR, NSLOT = 0, 5
DW = 81920
F1L = DW + 18 * 2560
ST = F1L + 8192
WQ = 0
GL = 36864
KM = GL + 512
KE = KM + 2048
KL = KE + 512
WK = KL + 512
WV = WK + 55296
ZA = WV + 36864
PK = WK
VV = PK + 18432
WO = WK
ZL = WO + 82944
LDS_BYTES = 163840
assert ZA + 9728 <= LDS_BYTES and ZL + 18432 <= LDS_BYTES and ST + 4 * 4608 + 16 <= LDS_BYTES
SX, SWS, SWQKV, SWPHI, SWO, SGW, SOUT = "s[4:7]", "s[8:11]", "s[12:15]", "s[16:19]", "s[20:23]", "s[24:27]", "s[28:31]"
W, TB, CG, ROT, NONCE, ID = "s32", "s33", "s34", "s35", "s36", "s37"
SPIN = "s58"
LOG2E = 0x3FB8AA3B
LANE, N_, G_, L16 = "v0", "v1", "v2", "v3"


def fl(x):
    return "0x%08x" % struct.unpack("<I", struct.pack("<f", x))[0]


def vr(b, n=4):
    return f"v[{b}:{b + n - 1}]"


def X(p, v):
    return 112 + 8 * p + 4 * v


class Asm:
    def __init__(self, dbg):
        self.l = []
        self.dbg = dbg
        self.vmq = []
        self.lgq = []
        self.uid = 0

    def __call__(self, s):
        for x in s.strip("\n").split("\n"):
            x = x.strip()
            if x:
                self.l.append("    " + x)

    def label(self, s):
        self.l.append(s + ":")

    def c(self, s):
        self.l.append("    ; " + s)

    def vm(self, s, tag=None):
        self(s); self.vmq.append(tag)

    def lg(self, s, tag=None):
        self(s); self.lgq.append(tag)

    def _w(self, q, tag):
        if tag is None:
            n = 0
        else:
            idx = [i for i, t in enumerate(q) if t == tag]
            if not idx:
                return None
            n = len(q) - idx[-1] - 1
        del q[:len(q) - n]
        return n

    def wvm(self, tag=None):
        n = self._w(self.vmq, tag)
        if n is not None:
            self(f"s_waitcnt vmcnt({min(n, 63)})")

    def wlg(self, tag=None):
        n = self._w(self.lgq, tag)
        if n is not None:
            self(f"s_waitcnt lgkmcnt({min(n, 15)})")

    def reset(self):
        self.vmq = []; self.lgq = []

    def stamp(self, i):
        if self.dbg:
            self(f"s_memtime s[{60 + 2 * i}:{61 + 2 * i}]\ns_waitcnt lgkmcnt(0)")
            self.lgq = []

    def mf(self, d, a, b, c=None, k16=False):
        cs = "0" if c is None else vr(c)
        if k16:
            self(f"v_mfma_f32_16x16x16_bf16 {vr(d)}, {vr(a, 2)}, {vr(b, 2)}, {cs}")
        else:
            self(f"v_mfma_f32_16x16x32_bf16 {vr(d)}, {vr(a)}, {vr(b)}, {cs}")

    def ex(self, lo, hi=None):
        if lo == -1:
            self("s_mov_b64 exec, -1")
        elif hi == 0 and lo < 0x80000000:
            self(f"s_mov_b64 exec, {lo:#x}")
        else:
            self(f"s_mov_b32 exec_lo, {lo:#x}\ns_mov_b32 exec_hi, {(lo if hi is None else hi):#x}")

    def poll(self, vaddr, vtmp, lo, hi):
        self.uid += 1
        u = self.uid
        self.ex(lo, hi)
        self.label(f"L_poll{u}")
        self(f"""buffer_load_dword {vtmp}, {vaddr}, {SWS}, 0 offen sc1
        s_sub_u32 {SPIN}, {SPIN}, 1
        s_cbranch_scc1 L_pollx{u}
        s_waitcnt vmcnt(0)
        v_cmp_ne_u32 vcc, {NONCE}, {vtmp}
        s_cbranch_vccnz L_poll{u}""")
        self.label(f"L_pollx{u}")
        self(f"s_max_i32 {SPIN}, {SPIN}, 0")
        self.ex(-1)
        self.vmq = []

    def flag(self, soff, vt0, vt1):
        self(f"v_mov_b32 {vt0}, {NONCE}\nv_mov_b32 {vt1}, 0\ns_mov_b64 exec, 1")
        self.vm(f"buffer_store_dword {vt0}, {vt1}, {SWS}, {soff} offen sc1")
        self.ex(-1)


def softmax(a, P, F, E, T):
    Ep = [[E + 18 * v + i for i in range(9)] for v in range(2)]
    Em = [[E + 18 * v + 9 + i for i in range(9)] for v in range(2)]
    ta = [T, T + 1]; tb = [T + 2, T + 3]
    for k in range(4):
        for v in range(2):
            p = P[v]
            if k == 0:
                a(f"v_max3_f32 v{ta[v]}, v{p[0]}, v{p[1]}, v{p[2]}\nv_max3_f32 v{tb[v]}, -v{p[0]}, -v{p[1]}, -v{p[2]}")
            else:
                a(f"v_max3_f32 v{ta[v]}, v{ta[v]}, v{p[2*k+1]}, v{p[2*k+2]}\nv_max3_f32 v{tb[v]}, v{tb[v]}, -v{p[2*k+1]}, -v{p[2*k+2]}")
    for v in range(2): a(f"v_permlane16_swap_b32 v{ta[v]}, v{tb[v]}")
    for v in range(2): a(f"v_max_f32 v{ta[v]}, v{ta[v]}, v{tb[v]}")
    for v in range(2): a(f"v_mul_f32 v{tb[v]}, s41, v{ta[v]}")
    for v in range(2): a(f"v_mul_f32 v{ta[v]}, s41, v{ta[v]}")
    for v in range(2): a(f"v_permlane16_swap_b32 v{ta[v]}, v{tb[v]}")
    for v in range(2):
        for i in range(9):
            a(f"v_fma_f32 v{Ep[v][i]}, v{P[v][i]}, s40, v{ta[v]}\nv_fma_f32 v{Em[v][i]}, v{P[v][i]}, s41, v{tb[v]}")
            if i:
                a(f"v_exp_f32 v{Ep[v][i-1]}, v{Ep[v][i-1]}\nv_exp_f32 v{Em[v][i-1]}, v{Em[v][i-1]}")
        a(f"v_exp_f32 v{Ep[v][8]}, v{Ep[v][8]}\nv_exp_f32 v{Em[v][8]}, v{Em[v][8]}")
    for i in range(1, 9):
        for v in range(2):
            s0, s1 = (Ep[v][0], Em[v][0]) if i == 1 else (ta[v], tb[v])
            a(f"v_add_f32 v{ta[v]}, v{s0}, v{Ep[v][i]}\nv_add_f32 v{tb[v]}, v{s1}, v{Em[v][i]}")
    for v in range(2): a(f"v_permlane16_swap_b32 v{ta[v]}, v{tb[v]}")
    for v in range(2): a(f"v_add_f32 v{ta[v]}, v{ta[v]}, v{tb[v]}")
    for v in range(2): a(f"v_rcp_f32 v{ta[v]}, v{ta[v]}")
    for v in range(2): a(f"v_mov_b32 v{tb[v]}, v{ta[v]}")
    for v in range(2): a(f"v_permlane16_swap_b32 v{ta[v]}, v{tb[v]}")
    for v in range(2):
        for i in range(9):
            a(f"v_mul_f32 v{Ep[v][i]}, v{Ep[v][i]}, v{ta[v]}\nv_mul_f32 v{Em[v][i]}, v{Em[v][i]}, v{tb[v]}")
        for i in range(4):
            a(f"v_cvt_pk_bf16_f32 v{F[v][i]}, v{Ep[v][2*i]}, v{Ep[v][2*i+1]}\nv_cvt_pk_bf16_f32 v{F[v][4+i]}, v{Em[v][2*i]}, v{Em[v][2*i+1]}")
        a(f"v_cvt_pk_bf16_f32 v{F[v][8]}, v{Ep[v][8]}, v{Em[v][8]}")


def gemm_t(a, nt, acc, buf, rd, bars, pre=2):
    nb = pre + 1
    def reads(p):
        if p in bars: bars[p]()
        for t in range(nt):
            a.lg(rd(p, t, buf + ((p % nb) * nt + t) * 4), ("w", p, t))
    for p in range(pre): reads(p)
    for p in range(18):
        if p + pre < 18: reads(p + pre)
        for t in range(nt):
            a.wlg(("w", p, t))
            for v in range(2):
                d = acc + (t * 2 + v) * 4
                a.mf(d, buf + ((p % nb) * nt + t) * 4, X(p, v), d if p else None)


def gen(dbg=False, DAHEAD=2, ACKP=3, stop=99):
    a = Asm(dbg)
    a.c("---- entry: kernel arguments, code prefetch into L2, ids")
    a("s_cmp_ge_u32 s2, 256\ns_cbranch_scc1 L_end")
    if dbg: a("s_memrealtime s[60:61]\ns_memtime s[62:63]")
    for r, off in ((4, 0), (12, 48), (16, 56), (8, 96), (20, 64), (24, 72), (28, 80)):
        a(f"s_load_dwordx2 s[{r}:{r+1}], s[0:1], {off}")
    a("s_getpc_b64 s[38:39]")
    a.label("L_pc")
    a(f"""v_lshrrev_b32 v1, 6, v0
    s_and_b32 s40, s2, 0xf8
    v_add_u32 v2, s40, v1
    v_lshlrev_b32 v2, 7, v2
    v_readfirstlane_b32 {W}, v1
    v_min_u32 v2, L_end-L_pc, v2
    global_load_dword v15, v2, s[38:39]
    v_and_b32 {LANE}, 63, v0
    v_and_b32 {N_}, 15, v0
    v_lshrrev_b32 {G_}, 4, {LANE}
    v_lshlrev_b32 {L16}, 4, {LANE}
    s_and_b32 s38, s2, 3
    s_bfe_u32 s39, s2, 0x20003
    s_lshl2_add_u32 {TB}, s38, s39
    s_bfe_u32 s38, s2, 0x10002
    s_lshr_b32 s39, s2, 5
    s_lshl3_add_u32 {CG}, s38, s39
    s_lshl1_add_u32 {ROT}, {TB}, {CG}
    s_mul_i32 s38, {ROT}, 57
    s_lshr_b32 s38, s38, 9
    s_mul_i32 s38, s38, 9
    s_sub_u32 {ROT}, {ROT}, s38
    s_lshl4_add_u32 {ID}, {TB}, {CG}
    s_mov_b32 s10, {DBG + 0x40000}
    s_mov_b32 s11, 0x20000
    s_mov_b32 {SPIN}, 0x10000
    s_bitcmp1_b32 {W}, 2
    s_cbranch_scc1 L_N""")

    a.c("==== T waves: weight share (fold / transpose), k and q projections, feature maps, o")
    a(f"""s_mul_i32 s42, s2, 911
    s_lshr_b32 s42, s42, 16
    s_mul_i32 s38, s42, 72
    s_sub_u32 s43, s2, s38
    s_mul_i32 s47, {W}, 4608
    s_add_u32 s47, s47, {ST}
    s_mov_b32 m0, s47
    s_cmp_eq_u32 s42, 3
    s_cbranch_scc1 L_T_wo_ld""")
    a.c("s42 part (0 k,1 v,2 q), s44 j, s45 cg_u")
    a(f"""s_lshr_b32 s44, s43, 2
    s_and_b32 s45, s43, 3
    s_lshl2_add_u32 s45, s45, {W}
    s_add_u32 s38, s42, 1
    s_cmp_eq_u32 s42, 2
    s_cselect_b32 s38, 0, s38
    s_mul_i32 s38, s38, 1152
    s_mul_i32 s39, s44, {32 * 3456}
    s_add_u32 s46, s38, s39
    s_mul_i32 s38, s45, 72
    s_add_u32 s46, s46, s38
    s_movk_i32 s38, 3376
    v_mul_u32_u24 v4, 52429, {LANE}""")
    for i in range(3):
        if i: a(f"v_add_u32 v5, {64 * i * 52429}, v4\nv_lshrrev_b32 v5, 18, v5")
        else: a("v_lshrrev_b32 v5, 18, v4")
        a(f"v_mad_u32_u24 v{6 + i}, v5, s38, {L16}")
    a(f"s_mov_b32 s14, {576 * 3456}\ns_mov_b32 s15, 0x20000\ns_mov_b32 s18, {32 * 648}\ns_mov_b32 s19, 0x20000\ns_mov_b32 s26, 1152\ns_mov_b32 s27, 0x20000")
    for i in range(6):
        if i: a(f"v_add_u32 v5, {64 * i * 52429}, v4\nv_lshrrev_b32 v5, 19, v5")
        else: a("v_lshrrev_b32 v5, 19, v4")
        a(f"v_sub_u32 v5, {64 * i}, v5\nv_add_lshl_u32 v{9 + i}, v5, {LANE}, 2")
    a(f"v_cmp_gt_u32 vcc, 40, {LANE}\ns_mul_i32 s48, s45, 1296\nv_cndmask_b32 v14, -16, v14, vcc")
    a("s_waitcnt lgkmcnt(0)")
    a(f"buffer_load_dwordx4 v6, {SWQKV}, s46 offen lds\nbuffer_load_dwordx4 v7, {SWQKV}, s46 offen offset:1024 lds")
    a("s_mov_b32 exec_hi, 0")
    a(f"buffer_load_dwordx4 v8, {SWQKV}, s46 offen offset:2048 lds")
    a(f"s_mov_b64 exec, -1\ns_load_dword {NONCE}, s[8:9], 0\ns_cmp_eq_u32 s42, 1\ns_cbranch_scc1 L_T_v_ld")
    for i in range(6):
        a(f"s_add_u32 m0, s47, {2560 + 256 * i}\nbuffer_load_dword v{9 + i}, {SWPHI}, s48 offen lds")
    a("s_branch L_T_gen")
    a.label("L_T_v_ld")
    a(f"v_lshlrev_b32 v5, 4, {G_}\ns_lshl_b32 s38, s44, 6\nbuffer_load_dwordx4 v[72:75], v5, {SGW}, s38 offen\ns_branch L_T_gen")
    a.label("L_T_wo_ld")
    a.c("s44 kappa, s45 jo_u")
    a(f"""s_lshr_b32 s44, s43, 1
    s_and_b32 s45, s43, 1
    s_lshl2_add_u32 s45, s45, {W}
    s_mul_i32 s46, s44, {36 * 1152}
    s_mul_i32 s38, s44, {288 * 1152}
    s_sub_u32 s38, s38, {(16 * 288 - 16) * 1152}
    s_cmp_lt_u32 s44, 16
    s_cselect_b32 s46, s46, s38
    s_cselect_b32 s48, 4, 2
    s_cselect_b32 s49, {4 * 1152}, 0
    s_cselect_b32 s50, 0, {32 * 1152}
    s_or_b32 s49, s49, s50
    s_mul_i32 s38, s45, 144
    s_add_u32 s46, s46, s38
    s_movk_i32 s38, 1008
    v_mul_u32_u24 v4, 7282, {LANE}""")
    for i in range(5):
        if i: a(f"v_add_u32 v5, {64 * i * 7282}, v4\nv_lshrrev_b32 v5, 16, v5")
        else: a("v_lshrrev_b32 v5, 16, v4")
        a(f"v_mad_u32_u24 v{6 + i}, v5, s38, {L16}\nv_lshrrev_b32 v5, s48, v5\nv_mad_u32_u24 v{6 + i}, v5, s49, v{6 + i}")
    a(f"s_mov_b32 s22, {576 * 1152}\ns_mov_b32 s23, 0x20000\ns_waitcnt lgkmcnt(0)\ns_load_dword {NONCE}, s[8:9], 0")
    a("s_cmp_ge_u32 s43, 36\ns_cbranch_scc1 L_T_gen")
    for i in range(4):
        a(f"buffer_load_dwordx4 v{6 + i}, {SWO}, s46 offen offset:{1024 * i} lds")
    a(f"s_add_u32 m0, s47, 4096\ns_add_u32 s46, s46, 4096\ns_mov_b32 exec_hi, 0\nbuffer_load_dwordx4 v10, {SWO}, s46 offen lds\ns_mov_b64 exec, -1")

    a.label("L_T_gen")
    a.c("hidden-DFT constants: k-steps 12+w (and 16+w for w<2), and the narrow tile")
    def main_setup():
        a(f"""s_mul_i32 s38, {CG}, 18
        v_add_u32 v4, s38, {N_}
        v_cvt_f32_u32 v114, v4
        v_mul_f32 v114, {fl(-1 / 576)}, v114""")
    def main_task(jexpr):
        a(jexpr)
        a(f"""s_lshl_b32 s38, s39, 5
        v_lshl_add_u32 v5, {G_}, 3, s38
        s_lshl_b32 s38, {ROT}, 1
        s_sub_u32 s39, s39, s38
        s_cselect_b32 s38, 18, 0
        s_add_u32 s39, s39, s38
        s_mul_i32 s39, s39, 2560
        s_add_u32 s39, s39, {DW}
        v_mul_u32_u24 v5, v5, v4
        v_add_u32 v115, s39, {L16}
        v_add_u32 v116, 1024, v115
        s_call_b64 s[56:57], L_gen576""")
    main_setup()
    main_task(f"s_add_u32 s39, {W}, 12")
    a(f"s_cmp_ge_u32 {W}, 2\ns_cbranch_scc1 L_T_gen2")
    main_task(f"s_add_u32 s39, {W}, 16")
    a.label("L_T_gen2")
    a(f"""s_lshl_b32 s38, {W}, 6
    v_add_u32 v5, s38, {LANE}
    v_min_u32 v5, 215, v5
    v_mul_u32_u24 v6, 21846, v5
    v_lshrrev_b32 v6, 16, v6
    v_mul_u32_u24 v7, 3, v6
    v_sub_u32 v7, v5, v7
    s_mul_i32 s38, {CG}, 18
    s_add_u32 s38, s38, 16
    v_add_u32 v4, s38, v7
    v_cvt_f32_u32 v114, v4
    v_mul_f32 v114, {fl(-1 / 576)}, v114
    v_lshlrev_b32 v5, 3, v6
    v_mul_u32_u24 v5, v5, v4
    v_lshrrev_b32 v8, 2, v6
    s_lshl_b32 s38, {ROT}, 1
    v_subrev_u32 v8, s38, v8
    v_add_u32 v9, 18, v8
    v_min_u32 v8, v8, v9
    v_mul_u32_u24 v8, 2560, v8
    v_and_b32 v6, 3, v6
    v_lshl_add_u32 v8, v6, 7, v8
    v_lshl_add_u32 v8, v7, 4, v8
    v_add_u32 v115, {DW + 2048}, v8
    v_add_u32 v116, 64, v115
    s_call_b64 s[56:57], L_gen576""")
    a.c("share: addresses, then wait for the staged rows")
    a(f"""v_bfe_u32 v4, {LANE}, 2, 2
    v_lshl_add_u32 v4, {G_}, 3, v4
    v_and_b32 v5, 3, {LANE}
    s_cmp_eq_u32 s42, 3
    s_cbranch_scc1 L_T_wo
    s_mul_i32 s48, s45, 55296
    s_mul_i32 s38, s44, 3072
    s_add_u32 s48, s48, s38
    s_add_u32 s48, s48, {WKG}
    s_mul_i32 s49, s45, 36864
    s_lshl_b32 s38, s44, 11
    s_add_u32 s49, s49, s38
    v_add_u32 v6, s42, {G_}
    v_and_b32 v6, 3, v6
    v_lshlrev_b32 v6, 6, v6
    s_lshl_b32 s38, s42, 8
    s_add_u32 s50, s48, s38
    s_cmp_eq_u32 s42, 1
    s_cbranch_scc1 L_T_v""")
    a.c("-- fold unit (k or q): W'[c][f] = sum_d W[c][d] wphi[d][f]")
    a(f"""s_add_u32 s49, s49, {WQG}
    s_cmp_eq_u32 s42, 0
    s_cselect_b32 s49, s48, s49
    s_add_u32 s38, s47, 2560
    v_lshl_add_u32 v7, v5, 3, s38
    s_add_u32 s38, s38, 32
    v_mov_b32 v8, s38""")
    for b in range(2):
        for hh in range(2):
            r = 16 + (b * 2 + hh) * 2
            a(f"v_add_u32 v9, {4 * b + 4 * hh}, v4")
            a("v_cmp_gt_u32 vcc, 18, v9" if hh == 0 else "v_cmp_le_u32 vcc, 18, v9")
            a(f"v_cndmask_b32 v9, 36, v9, vcc\nv_cmp_eq_u32 vcc, {hh}, v5\nv_mad_u32_u24 v{r}, v9, 40, v7\nv_cndmask_b32 v9, 36, v9, vcc\nv_mad_u32_u24 v{r + 1}, v9, 40, v8")
    a(f"""v_lshrrev_b32 v9, 2, {N_}
    v_lshl_add_u32 v9, v9, 2, {N_}
    s_movk_i32 s38, 80
    v_lshl_add_u32 v10, {G_}, 4, s47
    v_mad_u32_u24 v9, v9, s38, v10
    v_lshrrev_b32 v10, 3, {N_}
    v_mul_u32_u24 v10, 896, v10
    v_add_u32 v10, v10, {L16}
    v_lshrrev_b32 v11, 1, {N_}
    v_and_or_b32 v11, {N_}, 1, v11
    v_lshl_add_u32 v11, v11, 4, v6
    s_waitcnt vmcnt(0)""")
    a.stamp(2)
    for hh in range(2):
        for k in range(2):
            for b in range(2):
                a.lg(f"ds_read_b64_tr_b16 {vr(24 + (hh * 2 + k) * 4 + 2 * b, 2)}, v{16 + (b * 2 + hh) * 2 + k}", ("b", hh))
        for i in range(2):
            a.lg(f"ds_read_b128 {vr(40 + (hh * 2 + i) * 4)}, v9 offset:{320 * i + 8 * hh}", ("b", hh))
    for hh in range(2):
        a.wlg(("b", hh))
        for i in range(2): a.mf(56 + (hh * 2 + i) * 4, 40 + (hh * 2 + i) * 4, 24 + hh * 8)
        for i in range(2): a.mf(72 + i * 4, 40 + (hh * 2 + i) * 4, 28 + hh * 8, 72 + i * 4 if hh else None)
    for t in range(3):
        for k in range(4):
            a(f"v_cvt_pk_bf16_f32 v{80 + 4 * t + k}, v{56 + 8 * t + 2 * k}, v{57 + 8 * t + 2 * k}")
        if t < 2:
            a(f"buffer_store_dwordx4 {vr(80 + 4 * t)}, v10, {SWS}, s49 offen offset:{128 * t} sc1")
    a.ex(0x00330033)
    a(f"buffer_store_dwordx4 {vr(88)}, v11, {SWS}, s50 offen offset:2048 sc1")
    a("s_branch L_T_A")
    a.label("L_T_v")
    a.c("-- v unit: transpose only; also replicates the gate vector into the mixed tile")
    a(f"""s_add_u32 s49, s49, {WVG}
    s_movk_i32 s38, 80
    v_mov_b32 v8, s47
    v_mad_u32_u24 v8, v4, s38, v8
    v_lshrrev_b32 v9, 1, v5
    v_lshlrev_b32 v9, 3, v9
    v_lshl_add_u32 v9, v5, 4, v9
    v_add_u32 v9, v9, v8
    v_lshl_add_u32 v11, {N_}, 4, v6
    v_xor_b32 v10, 128, v11
    s_waitcnt vmcnt(0)""")
    for m in range(2):
        for b in range(2):
            a.lg(f"ds_read_b64_tr_b16 {vr(80 + 4 * m + 2 * b, 2)}, v9 offset:{320 * b + 8 * m}", m)
    for b in range(2):
        a.lg(f"ds_read_b64_tr_b16 {vr(88 + 2 * b, 2)}, v8 offset:{320 * b + 32}", 2)
    for m in range(2):
        a.wlg(m)
        a(f"buffer_store_dwordx4 {vr(80 + 4 * m)}, {L16}, {SWS}, s49 offen offset:{1024 * m} sc1")
    a.wlg(2)
    a.ex(0x000F000F)
    a(f"buffer_store_dwordx4 {vr(88)}, v11, {SWS}, s50 offen offset:2048 sc1\nbuffer_store_dwordx4 {vr(72)}, v10, {SWS}, s50 offen offset:2560 sc1")
    a("s_branch L_T_A")
    a.label("L_T_wo")
    a.c("-- wo unit: transpose with the K order of the o fragments")
    a(f"""s_cmp_ge_u32 s43, 36
    s_cbranch_scc1 L_T_A
    s_mul_i32 s49, s45, 82944
    s_mul_i32 s38, s44, 4608
    s_add_u32 s49, s49, s38
    s_add_u32 s49, s49, {WOG}
    s_add_u32 s50, s49, 4096
    s_movk_i32 s38, 144
    v_lshl_add_u32 v8, v5, 3, s47
    v_mad_u32_u24 v8, v4, s38, v8
    v_xor_b32 v9, 16, {L16}
    v_xor_b32 v10, 32, {L16}
    v_xor_b32 v11, 48, {L16}
    v_lshlrev_b32 v12, 4, {N_}
    v_lshl_add_u32 v12, {G_}, 7, v12
    s_waitcnt vmcnt(0)""")
    for t in range(5):
        for b in range(2):
            a.lg(f"ds_read_b64_tr_b16 {vr(80 + 4 * t + 2 * b, 2)}, v8 offset:{576 * b + 32 * t}", t)
    for t in range(4):
        a.wlg(t)
        a(f"buffer_store_dwordx4 {vr(80 + 4 * t)}, {L16 if t == 0 else 'v%d' % (8 + t)}, {SWS}, s49 offen offset:{1024 * t} sc1")
    a.wlg(4)
    a.ex(0x00FF00FF)
    a(f"buffer_store_dwordx4 {vr(96)}, v12, {SWS}, s50 offen sc1")

    a.label("L_T_A")
    a.reset()
    a.ex(-1)
    a.stamp(3)
    def xaddr():
        a(f"""v_lshrrev_b32 v4, 1, {N_}
        v_xor_b32 v4, v4, {G_}
        v_lshlrev_b32 v4, 4, v4
        v_lshl_add_u32 v4, {N_}, 7, v4
        s_lshl_b32 s38, {W}, 12
        v_add_u32 v4, s38, v4
        v_xor_b32 v5, 64, v4
        v_add_u32 v6, 0x10000, v4
        v_add_u32 v7, 0x10000, v5""")
    def xreads(P):
        slot = P % NSLOT
        for ks in range(2):
            for v in range(2):
                a.lg(f"ds_read_b128 {vr(X(2 * P + ks, v))}, v{4 + ks + (2 if slot == 4 else 0)} offset:{(slot % 4) * 16384 + 2048 * v}", ("x", ks))
    xaddr()
    a(f"""s_mov_b32 s40, {LOG2E}
    s_mov_b32 s41, {LOG2E | 0x80000000}
    s_waitcnt lgkmcnt(0)
    s_add_u32 {NONCE}, {NONCE}, 0x9e3779b9
    s_lshl_b32 s51, s2, 7
    s_add_u32 s51, s51, {F0}""")
    a.c("poll addresses: wave 0 the 54 W' units, wave 1 the 18 wo units")
    a(f"""s_lshr_b32 s38, {CG}, 2
    s_bfe_u32 s39, {CG}, 0x10002
    s_add_u32 s39, s39, 216
    s_cmp_eq_u32 {W}, 0
    s_cselect_b32 s38, s38, s39
    s_cselect_b32 s39, 9, 8
    s_cselect_b32 s52, 53, 17
    s_lshl_b32 s38, s38, 7
    s_add_u32 s38, s38, {F0}
    v_min_u32 v8, s52, {LANE}
    v_lshlrev_b32 v8, s39, v8
    v_add_u32 v8, s38, v8""")
    for P in range(9):
        if P == ACKP: a("s_waitcnt vmcnt(0)")
        a.wlg()
        a("s_barrier")
        xreads(P)
        if P == ACKP:
            a(f"s_cmp_lg_u32 {W}, 0\ns_cbranch_scc1 L_T_nf0")
            a.flag("s51", "v9", "v10")
            a.label("L_T_nf0")
            a.stamp(4)
    a.stamp(5)
    a(f"s_cmp_ge_u32 {W}, 2\ns_cbranch_scc1 L_T_np0")
    a.poll("v8", "v9", -1, None)
    a.label("L_T_np0")
    a.wlg()
    a.stamp(6)
    a("s_barrier")
    a.c("---- k projection (tiles K0, K1, mixed)")
    a(f"""v_add_u32 v4, {WK}, {L16}
    v_and_b32 v6, 3, {N_}
    v_add_u32 v5, v6, {G_}
    v_and_b32 v5, 3, v5
    v_lshlrev_b32 v5, 6, v5
    v_lshl_add_u32 v5, v6, 8, v5
    v_lshrrev_b32 v6, 2, {N_}
    v_lshl_add_u32 v5, v6, 4, v5
    v_add_u32 v5, {WK + 2048}, v5
    s_lshl_b32 s38, {W}, 5
    v_add_u32 v8, s38, {N_}
    v_mul_u32_u24 v6, 144, v8
    v_lshl_add_u32 v7, {G_}, 2, v6
    v_add_u32 v7, {PK + 128}, v7
    v_lshl_add_u32 v6, {G_}, 5, v6
    v_add_u32 v6, {PK}, v6
    v_lshlrev_b32 v9, 2, v8
    v_mul_u32_u24 v8, 80, v8
    v_lshl_add_u32 v8, {G_}, 2, v8
    v_add_u32 v8, {VV + 64}, v8
    s_setprio 1""")
    bar = lambda: a("s_barrier")
    gemm_t(a, 3, 16, 40, lambda p, t, r: f"ds_read_b128 {vr(r)}, v{5 if t == 2 else 4} offset:{p * 3072 + (1024 * t if t < 2 else 0)}",
           {0: bar, 4: bar, 8: bar, 12: bar})
    a("s_barrier")
    a.stamp(7)
    P = [[16 + 4 * v + j for j in range(4)] + [24 + 4 * v + j for j in range(4)] + [32 + 4 * v] for v in range(2)]
    Fk = [[40 + 10 * v + i for i in range(9)] for v in range(2)]
    softmax(a, P, Fk, 76, 12)
    for v in range(2):
        a(f"""ds_write_b128 v6, {vr(40 + 10 * v)} offset:{2304 * v}
        ds_write_b128 v6, {vr(44 + 10 * v)} offset:{2304 * v + 16}
        ds_write_b32 v7, v{48 + 10 * v} offset:{2304 * v}
        v_cvt_pk_bf16_f32 v{12 + v}, v{33 + 4 * v}, 1.0
        ds_write_b32 v8, v{12 + v} offset:{1280 * v}""")
    a("s_setprio 0\ns_waitcnt lgkmcnt(0)")
    a.stamp(8)
    a("s_barrier")
    a.c("---- gate, then q projection")
    for v in range(2): a(f"v_mul_f32 v{12 + v}, s41, v{35 + 4 * v}")
    for v in range(2): a(f"v_exp_f32 v{12 + v}, v{12 + v}")
    for v in range(2): a(f"v_add_f32 v{12 + v}, 1.0, v{12 + v}")
    for v in range(2): a(f"v_rcp_f32 v{12 + v}, v{12 + v}")
    a("s_nop 0")
    for v in range(2):
        a.lg(f"ds_write_b32 v9, v{12 + v} offset:{GL + 64 * v}")
        a(f"v_sub_f32 v{35 + 4 * v}, 1.0, v{12 + v}")
    gemm_t(a, 2, 16, 40, lambda p, t, r: f"ds_read_b128 {vr(r)}, {L16} offset:{WQ + p * 2048 + 1024 * t}", {6: bar})
    a.stamp(9)
    P = [[16 + 4 * v + j for j in range(4)] + [24 + 4 * v + j for j in range(4)] + [34 + 4 * v] for v in range(2)]
    for r in list(range(112, 142)) + [49, 59]: a(f"v_mov_b32 v{r}, 0")
    softmax(a, P, Fk, 76, 12)
    a.c("addresses for the kv fragments and the o stores")
    a(f"""v_lshrrev_b32 v4, 1, {G_}
    v_and_b32 v5, 1, {G_}
    v_and_b32 v6, 3, {N_}
    v_bfe_u32 v7, {N_}, 2, 1
    v_lshl_add_u32 v7, v7, 3, v6
    v_lshlrev_b32 v8, 10, v4
    v_lshl_add_u32 v8, v5, 8, v8
    v_lshl_add_u32 v8, v7, 4, v8
    v_lshlrev_b32 v9, 8, v4
    v_lshl_add_u32 v10, v5, 2, v9
    v_lshl_add_u32 v11, v6, 3, v10
    v_lshl_add_u32 v10, v7, 3, v10
    v_lshl_add_u32 v9, v5, 6, v9
    v_lshl_add_u32 v9, v6, 4, v9
    v_mul_u32_u24 v6, 18432, v5
    v_lshl_add_u32 v6, {N_}, 3, v6
    v_lshl_add_u32 v6, v4, 2, v6
    v_cmp_eq_u32 s[44:45], 1, v5
    s_lshl2_add_u32 s38, {TB}, {W}
    s_mul_i32 s38, s38, 36864
    s_add_u32 s38, s38, {OG}
    s_lshl_b32 s39, {CG}, 10
    s_add_u32 s46, s38, s39
    s_add_u32 s47, s46, 18432
    s_lshl_b32 s39, {CG}, 7
    s_add_u32 s48, s38, s39
    s_add_u32 s48, s48, 16384
    s_lshl2_add_u32 s51, {ID}, {W}
    s_lshl_b32 s51, s51, 7
    s_add_u32 s51, s51, {F2}""")
    a.stamp(10)
    a("s_barrier")
    a.stamp(11)
    a.ex(0x00FF00FF, 0xFF00FF00)
    for t in (2, 0, 1):
        for sg in range(2):
            if t < 2: a.lg(f"ds_read_b128 {vr(112 + (t * 2 + sg) * 4)}, v8 offset:{KM + 512 * sg + 64 * t}", t)
            else: a.lg(f"ds_read_b128 {vr(112 + (t * 2 + sg) * 4)}, v9 offset:{KE + 128 * sg}", t)
        if t < 2: a.lg(f"ds_read_b32 v{136 + 2 * t}, v10 offset:{KL + 32 * t}", t)
        else: a.lg(f"ds_read_b32 v{136 + 2 * t}, v11 offset:{KL + 128}", t)
    a.ex(-1)
    O = lambda t, v: 144 + (t * 2 + v) * 4
    for t in (2, 0, 1):
        a.wlg(t)
        for st in range(3):
            for v in range(2):
                if st < 2: a.mf(O(t, v), 112 + (t * 2 + st) * 4, 40 + 10 * v + 4 * st, O(t, v) if st else None)
                else: a.mf(O(t, v), 136 + 2 * t, 48 + 10 * v, O(t, v), k16=True)
        if t == 0:
            for v in range(2): a(f"v_add_f32 v{12 + v}, {fl(1e-6)}, v{O(2, v) + 1}")
            for v in range(2): a(f"v_rcp_f32 v{12 + v}, v{12 + v}")
            for v in range(2): a(f"v_mul_f32 v{12 + v}, v{12 + v}, v{35 + 4 * v}")
    for v in range(2):
        a(f"v_mul_f32 v{O(2, v)}, v{O(2, v)}, v{12 + v}\nv_mul_f32 v{O(2, v) + 2}, v{O(2, v) + 2}, v{12 + v}")
        a(f"v_cvt_pk_bf16_f32 v{O(2, v)}, v{O(2, v)}, v{O(2, v) + 2}")
    a(f"v_cndmask_b32 v14, v{O(2, 0)}, v{O(2, 1)}, s[44:45]")
    for v in range(2):
        for t in range(2):
            for j in range(4): a(f"v_mul_f32 v{O(t, v) + j}, v{O(t, v) + j}, v{12 + v}")
            for k in range(2): a(f"v_cvt_pk_bf16_f32 v{176 + 4 * v + 2 * t + k}, v{O(t, v) + 2 * k}, v{O(t, v) + 2 * k + 1}")
        a(f"buffer_store_dwordx4 {vr(176 + 4 * v)}, {L16}, {SWS}, s{46 + v} offen sc1")
    a(f"buffer_store_dword v14, v6, {SWS}, s48 offen sc1")
    a.stamp(12)
    a("s_barrier")
    a("s_waitcnt vmcnt(0)")
    a.flag("s51", "v9", "v10")
    a.stamp(13)
    a("s_branch L_fin" if dbg else "s_endpgm")

    a.c("==== constant generator: 8 angles -> cos fragment at v115, sin fragment at v116")
    a.label("L_gen576")
    a(f"""v_cvt_f32_u32 v112, v5
    v_mul_f32 v112, {fl(-1 / 576)}, v112
    v_fract_f32 v112, v112
    v_fma_f32 v113, 4.0, v114, v112""")
    a.label("L_gen8")
    for h in range(2):
        a(f"""v_mov_b32 v{120 + 4 * h}, v{112 + h}
        v_add_f32 v{121 + 4 * h}, v{112 + h}, v114
        v_fma_f32 v{122 + 4 * h}, 2.0, v114, v{112 + h}
        v_add_f32 v{123 + 4 * h}, v{122 + 4 * h}, v114""")
    for i in range(8):
        a(f"v_cos_f32 v{128 + i}, v{120 + i}\nv_sin_f32 v{120 + i}, v{120 + i}")
    for i in range(4):
        a(f"v_cvt_pk_bf16_f32 v{136 + i}, v{128 + 2 * i}, v{129 + 2 * i}")
    for i in range(4):
        a(f"v_cvt_pk_bf16_f32 v{140 + i}, v{120 + 2 * i}, v{121 + 2 * i}")
    a("ds_write_b128 v115, v[136:139]\nds_write_b128 v116, v[140:143]\ns_setpc_b64 s[56:57]")

    a.label("L_N")
    a.reset()
    a.c("==== N waves: x stream, hidden DFT, first FFT stage, v, kv sums, output GEMM")
    a(f"""s_and_b32 {W}, {W}, 3
    v_and_b32 v8, 7, {LANE}
    v_xor_b32 v8, v8, {G_}
    v_lshrrev_b32 v9, 3, {LANE}
    v_mul_u32_u24 v9, {RS}, v9
    v_lshl_add_u32 v8, v8, 4, v9
    v_xor_b32 v9, 64, v8
    v_add_u32 v9, {8 * RS}, v9
    s_and_b32 s38, {W}, 1
    s_lshl1_add_u32 s42, {TB}, s38
    s_lshr_b32 s38, {W}, 1
    s_lshl_b32 s38, s38, 5
    s_add_u32 s42, s42, s38
    s_mul_i32 s42, s42, 1152
    s_lshl_b32 s43, {ROT}, 7
    s_lshl_b32 s44, {W}, 12
    s_mov_b32 s6, {2048 * 1152}
    s_mov_b32 s7, 0x20000""")
    def xdma(P):
        a("s_add_u32 s45, s42, s43")
        a(f"s_add_u32 s46, s45, {16 * RS}")
        for i in range(4):
            a(f"s_add_u32 m0, s44, {XR + (P % NSLOT) * 16384 + 1024 * i}")
            if i == 0 and P == 0: a("s_waitcnt lgkmcnt(0)")
            if i == 1: a("s_add_u32 s43, s43, 128")
            if i == 2: a("s_cmpk_eq_u32 s43, 1152\ns_cselect_b32 s43, 0, s43")
            a.vm(f"buffer_load_dwordx4 v{8 + (i & 1)}, {SX}, s{45 + (i >> 1)} offen lds", ("x", P))
    xdma(0)
    a(f"s_load_dword {NONCE}, s[8:9], 0\ns_mov_b32 s30, {2048 * 1152}\ns_mov_b32 s31, 0x20000")
    main_setup()
    for k in range(3): main_task(f"s_add_u32 s39, {W}, {4 * k}")
    a.c("first-stage matrix, tile w")
    a(f"""v_lshrrev_b32 v4, 1, {N_}
    s_lshl_b32 s38, {W}, 3
    v_add_u32 v4, s38, v4
    v_cvt_f32_u32 v114, v4
    v_mul_f32 v114, {fl(1 / 32)}, v114
    v_and_b32 v5, 1, {N_}
    v_lshlrev_b32 v5, 1, v5
    v_mad_u32_u24 v5, v4, {G_}, v5
    v_and_b32 v5, 7, v5
    v_cvt_f32_u32 v112, v5
    v_mul_f32 v112, {fl(1 / 8)}, v112
    v_and_b32 v4, 1, v4
    v_cvt_f32_u32 v113, v4
    v_fma_f32 v113, v113, 0.5, v112
    s_lshl_b32 s38, {W}, 11
    s_add_u32 s38, s38, {F1L}
    v_add_u32 v115, s38, {L16}
    v_add_u32 v116, 1024, v115
    s_call_b64 s[56:57], L_gen8""")
    for P in range(1, DAHEAD): xdma(P)
    xaddr()
    a(f"""v_add_u32 v10, {DW}, {L16}
    v_and_b32 v11, 3, {N_}
    v_lshrrev_b32 v12, 3, {N_}
    v_lshl_add_u32 v11, v12, 2, v11
    v_lshlrev_b32 v11, 4, v11
    v_lshl_add_u32 v11, {G_}, 7, v11
    v_add_u32 v11, {DW + 2048}, v11
    s_waitcnt lgkmcnt(0)
    s_add_u32 {NONCE}, {NONCE}, 0x9e3779b9""")
    a.stamp(2)
    for P in range(9):
        a.wvm(("x", P))
        a("s_barrier")
        if P == 0: a.stamp(3)
        if P + DAHEAD < 9: xdma(P + DAHEAD)
        slot = P % NSLOT
        for ks in range(2):
            for v in range(2):
                a.lg(f"ds_read_b128 {vr(X(2 * P + ks, v))}, v{4 + ks + (2 if slot == 4 else 0)} offset:{(slot % 4) * 16384 + 2048 * v}", ("x", ks))
            for t in range(3):
                p = 2 * P + ks
                a.lg(f"ds_read_b128 {vr(40 + (ks * 3 + t) * 4)}, v{11 if t == 2 else 10} offset:{p * 2560 + (1024 * t if t < 2 else 0)}", ("w", ks, t))
        for ks in range(2):
            for t in range(3):
                a.wlg(("w", ks, t))
                for v in range(2):
                    d = 16 + (t * 2 + v) * 4
                    a.mf(d, X(2 * P + ks, v), 40 + (ks * 3 + t) * 4, d if P + ks else None)
    a(f"v_add_u32 v10, {F1L}, {L16}")
    for i in range(8): a.lg(f"ds_read_b128 {vr(64 + 4 * i)}, v10 offset:{1024 * i}")
    a.c("W' stream set-up: s42..s44 source bases, s45..s47 rotating offsets, s48 lds")
    a(f"""s_mul_i32 s42, {CG}, 55296
    s_add_u32 s42, s42, {WKG}
    s_mul_i32 s43, {CG}, 36864
    s_add_u32 s44, s43, {WQG}
    s_add_u32 s43, s43, {WVG}
    s_lshl_b32 s48, {W}, 10
    s_mul_i32 s45, {ROT}, 6144
    s_add_u32 s45, s45, s48
    s_lshl_b32 s46, {ROT}, 12
    s_add_u32 s46, s46, s48
    s_mov_b32 s47, s46
    s_and_b32 s49, s48, 0x800""")
    for t in range(3):
        for k in range(4):
            a(f"v_cvt_pk_bf16_f32 v{96 + 4 * t + k}, v{16 + 8 * t + 2 * k}, v{17 + 8 * t + 2 * k}")
    for k in range(4):
        a(f"v_mov_b32_dpp v{108 + k}, v{104 + k} row_ror:8 row_mask:0xf bank_mask:0xf")
    a.wlg()
    a.stamp(5)
    a("s_barrier")
    a.stamp(6)
    def wdma(r):
        part, rr = (0, r) if r < 14 else (1, r - 14) if r < 23 else (2, r - 23)
        size = (55296, 36864, 36864)[part]; lds = (WK, WV, WQ)[part]
        o = f"s{45 + part}"
        if r == 13:
            a(f"s_sub_u32 {o}, {o}, s49\ns_cselect_b32 s38, {size}, 0\ns_add_u32 {o}, {o}, s38\ns_sub_u32 s38, s48, s49\ns_add_u32 m0, s38, {lds + 4096 * rr}")
        else:
            a(f"s_add_u32 m0, s48, {lds + 4096 * rr}")
        a(f"s_add_u32 s38, s{42 + part}, {o}")
        a.vm(f"buffer_load_dwordx4 {L16}, {SWS}, s38 offen sc1 lds", ("r", r))
        if r not in (13, 22, 31):
            a(f"s_add_u32 {o}, {o}, 4096\ns_sub_u32 s38, {o}, {size}\ns_cselect_b32 {o}, {o}, s38")
    for r in range(8): wdma(r)
    a.c("---- first FFT stage over the 32 tokens of this wave")
    for et in range(2):
        for pt in range(2):
            for m in range(4):
                d = 16 + (et * 4 + m) * 4
                a.mf(d, 64 + (m * 2 + pt) * 4, 96 + (et * 2 + pt) * 4, d if pt else None)
    a(f"""v_mul_u32_u24 v10, 608, {G_}
    v_lshl_add_u32 v10, {N_}, 4, v10
    s_lshl_b32 s38, {W}, 2
    s_add_u32 s38, s38, {ZA}
    v_add_u32 v10, s38, v10""")
    for et in range(2):
        if et: a.ex(0x00070007)
        for m in range(4):
            for jp in range(2):
                s = 16 + (et * 4 + m) * 4 + 2 * jp
                a(f"v_cvt_pk_bf16_f32 v{s}, v{s}, v{s + 1}")
                a.lg(f"ds_write_b32 v10, v{s} offset:{(8 * m + jp) * 304 + 256 * et}")
    a.ex(-1)
    for r in range(8, 11): wdma(r)
    a.wlg()
    a.wvm(("r", 2)); a("s_barrier")
    a.stamp(7)
    for r in range(11, 14): wdma(r)
    a.wvm(("r", 5)); a("s_barrier")
    for r in range(14, 17): wdma(r)
    a(f"v_add_u32 v10, s48, {L16}\nv_add_u32 v11, {ZA}, v10")
    for k in range(3): a.lg(f"ds_read_b128 {vr(16 + 4 * k)}, v11 offset:{4096 * k}", k)
    a.wvm(("r", 8)); a("s_barrier")
    for r in range(17, 22): wdma(r)
    a.wvm(("r", 13)); a("s_barrier")
    a(f"""s_mul_i32 s50, {ID}, 9728
    s_add_u32 s50, s50, {ZCG}
    s_add_u32 s51, s50, 4096
    s_add_u32 s52, s50, 8192
    v_cmp_gt_u32 vcc, 1536, v10
    v_cndmask_b32 v11, -16, v10, vcc""")
    a.wlg()
    wdma(22)
    for k in range(3):
        a.vm(f"buffer_store_dwordx4 {vr(16 + 4 * k)}, v{11 if k == 2 else 10}, {SWS}, s{50 + k} offen sc1")
    for r in range(23, 32): wdma(r)
    a.c("addresses for the v write and the kv contraction")
    a(f"""v_add_u32 v4, {WV}, {L16}
    s_lshl_b32 s38, {W}, 5
    v_add_u32 v5, s38, {N_}
    v_mul_u32_u24 v5, 80, v5
    v_lshl_add_u32 v5, {G_}, 4, v5
    v_add_u32 v5, {VV}, v5
    v_bfe_u32 v6, {LANE}, 2, 2
    v_lshlrev_b32 v6, 1, v6
    v_lshl_add_u32 v6, {G_}, 3, v6
    v_and_b32 v9, 3, {LANE}
    s_lshr_b32 s42, {W}, 1
    s_and_b32 s43, {W}, 1
    v_mul_u32_u24 v8, 80, v6
    v_mul_u32_u24 v7, 144, v6
    v_lshl_add_u32 v6, v9, 3, v7
    s_lshl_b32 s38, s42, 6
    s_add_u32 s38, s38, {PK}
    v_add_u32 v6, s38, v6
    s_lshl_b32 s38, s42, 3
    s_add_u32 s39, s38, {PK + 128}
    v_add_u32 v7, s39, v7
    s_add_u32 s38, s38, {VV + 64}
    s_lshl_b32 s39, s42, 5
    s_add_u32 s39, s39, {VV}
    s_cmp_eq_u32 s43, 0
    s_cselect_b32 s38, s39, s38
    s_cselect_b32 s39, 8, 0
    s_cselect_b32 s44, -1, 0x000f000f
    s_cselect_b32 s45, 8, 6
    s_cselect_b32 s46, 0, 1024
    v_add_u32 v8, s38, v8
    v_mad_u32_u24 v8, v9, s39, v8
    v_lshlrev_b32 v9, s45, {G_}
    v_lshl_add_u32 v9, {N_}, 4, v9
    v_lshlrev_b32 v12, 3, {N_}
    s_lshl4_add_u32 s38, {CG}, {TB}
    s_mul_i32 s38, s38, 3072
    s_mul_i32 s39, s42, 1536
    s_add_u32 s38, s38, s39
    s_add_u32 s38, s38, {PARTG}
    s_add_u32 s46, s46, s38
    s_lshl_b32 s39, s43, 7
    s_add_u32 s47, s38, s39""")
    a.wvm(("r", 22)); a("s_barrier")
    a.stamp(8)
    gemm_t(a, 2, 16, 40, lambda p, t, r: f"ds_read_b128 {vr(r)}, v4 offset:{p * 2048 + 1024 * t}", {})
    a(f"s_lshl_b32 s50, {ID}, 7\ns_add_u32 s50, s50, {FZ}\ns_lshl2_add_u32 s51, {ID}, {W}\ns_lshl_b32 s51, s51, 7\ns_add_u32 s51, s51, {F1}\ns_setprio 1")
    for v in range(2):
        for k in range(4):
            s = 16 + ((k >> 1) * 2 + v) * 4 + 2 * (k & 1)
            a(f"v_cvt_pk_bf16_f32 v{40 + 4 * v + k}, v{s}, v{s + 1}")
        a.lg(f"ds_write_b128 v5, {vr(40 + 4 * v)} offset:{1280 * v}")
    a.wvm(); a.wlg()
    a.stamp(9)
    a("s_barrier")
    a.c("---- kv partial of (head w>>1, main/extra columns) over the 128 tokens")
    for q in range(4):
        for b in range(2):
            a.lg(f"ds_read_b64_tr_b16 {vr(112 + 16 * q + 2 * b, 2)}, v8 offset:{2560 * q + 80 * b}", q)
        for m in range(3):
            for b in range(2):
                a.lg(f"ds_read_b64_tr_b16 {vr(116 + 16 * q + 4 * m + 2 * b, 2)}, v{7 if m == 2 else 6} offset:{4608 * q + 144 * b + (32 * m if m < 2 else 0)}", q)
        if q:
            a.wlg(q - 1)
            for m in range(3): a.mf(16 + 4 * m, 100 + 16 * q + 4 * m, 96 + 16 * q, 16 + 4 * m if q > 1 else None)
    a.wlg(3)
    for m in range(3): a.mf(16 + 4 * m, 164 + 4 * m, 160, 16 + 4 * m)
    for k in range(6): a(f"v_cvt_pk_bf16_f32 v{40 + k}, v{16 + 2 * k}, v{17 + 2 * k}")
    a("s_mov_b32 exec_lo, s44\ns_mov_b32 exec_hi, s44")
    a.vm(f"buffer_store_dwordx4 {vr(40)}, v9, {SWS}, s46 offen sc1", "p")
    a.ex(0xFFFF, 0)
    a.vm(f"buffer_store_dwordx2 {vr(44, 2)}, v12, {SWS}, s47 offen offset:1280 sc1", "p")
    a.ex(-1)
    a("s_setprio 0")
    a.stamp(10)
    a("s_barrier")
    a(f"s_cmp_lg_u32 {W}, 0\ns_cbranch_scc1 L_N_nfz")
    a.flag("s50", "v13", "v14")
    a.vmq.pop()
    a.label("L_N_nfz")
    a.c("---- wo' stream; s52 jo, s53 t1")
    a(f"""s_and_b32 s52, {CG}, 7
    s_lshr_b32 s38, {CG}, 3
    s_lshl1_add_u32 s53, {TB}, s38
    s_mul_i32 s45, s52, 82944
    s_add_u32 s45, s45, {WOG}
    s_add_u32 s49, s45, 81920
    s_add_u32 s45, s45, s48""")
    def odma(r):
        if r < 20:
            a(f"s_add_u32 m0, s48, {WO + 4096 * r}\ns_add_u32 s38, s45, {4096 * r}")
            a.vm(f"buffer_load_dwordx4 {L16}, {SWS}, s38 offen sc1 lds", "wo")
        else:
            a(f"s_mov_b32 m0, {WO + 81920}")
            a.vm(f"buffer_load_dwordx4 {L16}, {SWS}, s49 offen sc1 lds", "wo")
    for r in range(6): odma(r)
    a.wvm("p")
    a.flag("s51", "v13", "v14")
    a.stamp(11)
    for r in range(6, 21): odma(r)
    a.c("poll addresses: lanes 0-31 partial flags, lanes 32-47 Z flags; gather and Z addresses")
    a(f"""s_sub_u32 s38, 7, s52
    s_min_u32 s54, s38, s52
    v_lshlrev_b32 v4, 6, {N_}
    v_add_u32 v4, v4, {G_}
    s_lshl1_add_u32 s38, {CG}, s42
    s_lshl_b32 s38, s38, 8
    s_add_u32 s38, s38, {F1}
    v_lshl_add_u32 v4, v4, 7, s38
    v_lshrrev_b32 v5, 2, {N_}
    v_lshlrev_b32 v5, 4, v5
    v_and_or_b32 v5, {N_}, 3, v5
    s_lshl4_add_u32 s38, {W}, s54
    s_lshl_b32 s38, s38, 9
    s_add_u32 s38, s38, {FZ}
    v_lshl_add_u32 v5, v5, 7, s38
    v_cmp_gt_u32 vcc, 32, {LANE}
    v_mul_u32_u24 v6, 3072, {G_}
    v_lshl_add_u32 v6, {N_}, 4, v6
    v_cndmask_b32 v4, v5, v4, vcc
    s_mul_i32 s46, {CG}, {16 * 3072}
    s_mul_i32 s38, {W}, 768
    s_add_u32 s46, s46, s38
    s_add_u32 s46, s46, {PARTG}
    v_lshrrev_b32 v5, 1, {N_}
    v_and_b32 v7, 1, {N_}
    v_lshlrev_b32 v7, 4, v7
    s_movk_i32 s38, 0x3f80
    v_lshlrev_b32 v7, v7, s38""")
    for k in range(4):
        a(f"v_cmp_eq_u32 vcc, {k}, v5\nv_cndmask_b32 v{28 + k}, 0, v7, vcc")
    a.c("LDS addresses of the three summed blocks")
    a(f"""s_lshl_b32 s38, s42, 10
    s_add_u32 s38, s38, {KM}
    v_lshlrev_b32 v7, 4, {N_}
    v_lshl_add_u32 v7, {G_}, 8, v7
    v_add_u32 v7, s38, v7
    v_add_u32 v8, 8, v7
    v_add_u32 v9, 512, v7
    s_cmp_eq_u32 s43, 0
    s_cbranch_scc1 L_N_even
    v_add_u32 v7, 520, v7
    s_lshl_b32 s38, s42, 8
    s_add_u32 s39, s38, {KE}
    v_lshrrev_b32 v8, 3, {N_}
    v_lshlrev_b32 v8, 7, v8
    v_lshl_add_u32 v8, {G_}, 6, v8
    v_and_b32 v9, 3, {N_}
    v_lshl_add_u32 v8, v9, 4, v8
    v_bfe_u32 v9, {N_}, 2, 1
    v_lshl_add_u32 v8, v9, 3, v8
    v_add_u32 v8, s39, v8
    s_add_u32 s39, s38, {KL}
    v_lshlrev_b32 v9, 4, {N_}
    v_lshl_add_u32 v9, {G_}, 3, v9
    v_add_u32 v9, s39, v9""")
    a.label("L_N_even")
    a.c("Z gather addresses v32..v36")
    a(f"""s_cmp_ge_u32 s52, 4
    s_cselect_b32 s38, -1, 0
    s_cselect_b32 s39, 72, 0
    s_cselect_b32 s47, 16, 0
    s_cselect_b32 s55, {fl(-1 / 2048)}, 0
    s_cselect_b32 s50, 0, {fl(1 / 2048)}
    s_or_b32 s55, s55, s50
    s_xor_b32 s50, s53, s38
    s_sub_u32 s50, s50, s38
    s_and_b32 s50, s50, 31
    s_mul_i32 s50, s50, 304
    s_add_u32 s47, s47, s50
    s_lshl4_add_u32 s50, {W}, s54
    s_mul_i32 s50, s50, {4 * 9728}
    s_add_u32 s47, s47, s50
    s_add_u32 s47, s47, {ZCG}
    s_movk_i32 s50, 9440""")
    for t in range(5):
        if t < 4:
            a(f"v_xor_b32 v10, {17 * t}, {N_}" if t else f"v_mov_b32 v10, {N_}")
            if t == 0: a(f"v_mul_u32_u24 v12, {16 * 9728}, {G_}")
        else:
            a(f"v_and_or_b32 v10, {LANE}, 7, 64\nv_bfe_u32 v12, {LANE}, 3, 2\nv_mul_u32_u24 v12, {16 * 9728}, v12")
        a(f"""v_xor_b32 v10, s38, v10
        v_add_u32 v10, s39, v10
        v_mul_u32_u24 v11, 3641, v10
        v_lshrrev_b32 v11, 16, v11
        v_mad_u32_u24 v11, v11, s50, v12
        v_lshl_add_u32 v{32 + t}, v10, 4, v11""")
    a.c("second-stage matrix rows (cos, +-sin) -> v48..v63")
    a(f"""s_lshl_b32 s38, s43, 10
    s_lshl_b32 s39, s42, 5
    s_add_u32 s38, s38, s39
    s_add_u32 s38, s38, s53
    v_lshl_add_u32 v10, {N_}, 6, s38
    v_mul_u32_u24 v11, v10, {G_}
    v_and_b32 v11, 1023, v11
    v_cvt_f32_u32 v10, v10
    v_cvt_f32_u32 v11, v11
    v_mul_f32 v10, s55, v10
    v_mul_f32 v11, s55, v11
    v_add_f32 v11, v11, v11""")
    for ks in range(4):
        for ww in range(4):
            a(f"v_fmamk_f32 v{64 + ww}, v10, {fl(8 * ks + (ww & 1) + 32 * (ww >> 1))}, v11")
        for ww in range(4): a(f"v_fract_f32 v{64 + ww}, v{64 + ww}")
        for ww in range(4): a(f"v_cos_f32 v{68 + ww}, v{64 + ww}\nv_sin_f32 v{64 + ww}, v{64 + ww}")
        for ww in range(4): a(f"v_cvt_pk_bf16_f32 v{48 + 4 * ks + ww}, v{68 + ww}, v{64 + ww}")
    a.poll("v4", "v5", 0xFFFFFFFF, 0xFFFF)
    a.stamp(12)
    a.c("---- gather the 16 partials and add them on the matrix pipe")
    for pq in range(4):
        if pq: a(f"s_add_u32 s46, s46, {4 * 3072}")
        for b in range(3):
            a.vm(f"buffer_load_dwordx4 {vr(112 + (pq * 3 + b) * 4)}, v6, {SWS}, s46 offen offset:{256 * b} sc1", ("g", pq, b))
    a(f"s_mul_i32 s38, {W}, 4608\ns_add_u32 s38, s38, {ZL}")
    for t in range(5):
        a(f"s_add_u32 m0, s38, {1024 * t}")
        if t == 4: a("s_mov_b32 exec_hi, 0")
        a.vm(f"buffer_load_dwordx4 v{32 + t}, {SWS}, s47 offen sc1 lds", "z")
    a.ex(-1)
    for pq in range(4):
        for b in range(3):
            a.wvm(("g", pq, b))
            a.mf(16 + 4 * b, 28, 112 + (pq * 3 + b) * 4, 16 + 4 * b if pq else None)
    a("s_mov_b32 exec_hi, 0")
    for b in range(3):
        a(f"v_cvt_pk_bf16_f32 v{40 + 2 * b}, v{16 + 4 * b}, v{17 + 4 * b}\nv_cvt_pk_bf16_f32 v{41 + 2 * b}, v{18 + 4 * b}, v{19 + 4 * b}")
        a.lg(f"ds_write_b64 v{7 + b}, {vr(40 + 2 * b, 2)}")
    a.ex(-1)
    a.wlg()
    a.stamp(13)
    a("s_barrier")
    a.c("---- output tile: addresses")
    a(f"""v_lshrrev_b32 v9, 2, {N_}
    v_and_b32 v4, 3, {N_}
    v_lshlrev_b32 v4, 6, v4
    v_lshl_add_u32 v4, {G_}, 8, v4
    v_mul_u32_u24 v9, 1040, v9
    v_add3_u32 v4, v4, v9, 0
    v_add_u32 v4, {WO}, v4
    v_xor_b32 v5, 16, v4
    v_xor_b32 v6, 32, v4
    v_xor_b32 v7, 48, v4
    v_and_b32 v8, 7, {N_}
    v_lshlrev_b32 v8, 4, v8
    v_lshl_add_u32 v8, {G_}, 7, v8
    v_add_u32 v8, {WO + 4096}, v8""")
    for i in range(5): a(f"v_add_u32 v{9 + i}, {14 * 4608}, v{4 + i}")
    a(f"""s_and_b32 s38, s53, 1
    s_lshl1_add_u32 s44, s42, s38
    s_lshl1_add_u32 s38, s44, s43
    s_lshl_b32 s39, s38, 6
    s_add_u32 s39, s39, {GL}
    v_lshl_add_u32 v14, {G_}, 4, s39
    s_lshl3_add_u32 s38, {TB}, s38
    s_mul_i32 s46, s38, 18432
    s_add_u32 s46, s46, {OG}
    s_lshl_b32 s38, {TB}, 6
    s_add_u32 s38, s38, s44
    s_lshl_b32 s38, s38, 7
    s_add_u32 s38, s38, {F2}
    v_lshl_add_u32 v15, {N_}, 9, s38""")
    a.lg(f"ds_read_b128 {vr(36)}, v14", "g")
    def frd(kap, i, r):
        return f"ds_read_b128 {vr(r)}, v{(4 if kap < 14 else 9) + i} offset:{(kap % 14) * 4608}"
    NPRE = 5
    PRE = lambda kap, i: 152 + (kap * 5 + i) * 4
    for kap in range(NPRE):
        for i in range(5): a.lg(frd(kap, i, PRE(kap, i)), "pre")
    a.wvm()
    a("s_barrier")
    for ks in range(4):
        for i in range(5): a.lg(frd(18 + ks, i, 64 + (ks * 5 + i) * 4), ("z", ks))
    for ks in range(4):
        a.wlg(("z", ks))
        for i in range(5): a.mf(16 + 4 * i, 48 + 4 * ks, 64 + (ks * 5 + i) * 4, 16 + 4 * i if ks else None)
    a(f"""v_lshlrev_b32 v14, 3, {N_}
    v_lshl_add_u32 v14, {G_}, 8, v14
    s_add_u32 s47, s46, 4096
    s_add_u32 s48, s46, 8192
    s_add_u32 s49, s46, 12288
    s_add_u32 s50, s46, 16384""")
    for i in range(5):
        for j in range(4): a(f"v_mul_f32 v{16 + 4 * i + j}, v{16 + 4 * i + j}, v{36 + j}")
    a.stamp(14)
    a.poll("v15", "v36", 0xFFFF, 0)
    a.stamp(15)
    for k in range(16):
        a.vm(f"buffer_load_dwordx4 {vr(40 + 4 * k)}, {L16}, {SWS}, s{46 + (k >> 2)} offen offset:{1024 * (k & 3)} sc1", ("o", k))
    for u in range(2):
        for i in range(2):
            a.vm(f"buffer_load_dwordx2 {vr(104 + 4 * u + 2 * i, 2)}, v14, {SWS}, s50 offen offset:{1024 * u + 128 * i} sc1", ("o", 16 + u))
    a(f"""s_or_b32 s38, s2, {W}
    s_cbranch_scc1 L_N_noep""")
    a.flag("0", "v36", "v37")
    a.vmq.pop()
    a.label("L_N_noep")
    a(f"""v_mul_u32_u24 v36, {4 * RS}, {G_}
    v_lshl_add_u32 v37, {N_}, 1, v36
    v_lshl_add_u32 v36, {N_}, 3, v36
    s_lshl_b32 s38, s43, 10
    s_lshl_b32 s39, s42, 5
    s_add_u32 s38, s38, s39
    s_add_u32 s38, s38, s53
    s_mul_i32 s46, s38, 1152
    s_mul_i32 s38, s52, 144
    s_add_u32 s46, s46, s38
    s_add_u32 s47, s46, {RS}
    s_add_u32 s48, s46, {2 * RS}
    s_add_u32 s49, s46, {3 * RS}""")
    SB = lambda kap, i: 112 + (((kap - NPRE) & 1) * 5 + i) * 4
    for kap in (NPRE, NPRE + 1):
        for i in range(5): a.lg(frd(kap, i, SB(kap, i)), ("w", kap, i))
    for kap in range(18):
        idx = max(i for i, t in enumerate(a.vmq) if t == ("o", kap))
        a.wvm(("o", kap))
        for i in range(5):
            if kap >= NPRE: a.wlg(("w", kap, i))
            a.mf(16 + 4 * i, 40 + 4 * kap, PRE(kap, i) if kap < NPRE else SB(kap, i), 16 + 4 * i)
            if kap >= NPRE and kap + 2 < 18: a.lg(frd(kap + 2, i, SB(kap, i)), ("w", kap + 2, i))
    a.stamp(16)
    for j in range(4):
        a(f"v_cvt_pk_bf16_f32 v{40 + 2 * j}, v{16 + j}, v{20 + j}\nv_cvt_pk_bf16_f32 v{41 + 2 * j}, v{24 + j}, v{28 + j}")
        a(f"buffer_store_dwordx2 {vr(40 + 2 * j, 2)}, v36, {SOUT}, s{46 + j} offen")
    a("v_cvt_pk_bf16_f32 v48, v32, v33\nv_cvt_pk_bf16_f32 v49, v34, v35")
    a.ex(0x00FF00FF)
    for j in range(4):
        a(f"buffer_store_short{'_d16_hi' if j & 1 else ''} v{48 + (j >> 1)}, v37, {SOUT}, s{46 + j} offen offset:128")
    if dbg:
        a("s_waitcnt vmcnt(0)")
        a.stamp(17)
        a(f"s_add_u32 {W}, {W}, 4")
        a.label("L_fin")
        a(f"s_memrealtime s[96:97]\ns_lshl3_add_u32 s38, s2, {W}\ns_lshl_b32 s38, s38, 7\ns_add_u32 s38, s38, {DBG}\ns_mov_b64 exec, 1\nv_mov_b32 v0, 0\ns_waitcnt lgkmcnt(0)")
        for i in range(19):
            a(f"v_mov_b32 v1, s{60 + 2 * i}\nbuffer_store_dword v1, v0, {SWS}, s38 offen offset:{4 * i}")
    a.label("L_end")
    a("s_endpgm")
    lines, added = pad(a.l)
    head = f"""; Fused FNet (two-stage FFT on MFMA) + Hedgehog linear attention + gate, one persistent launch.
; @launch grid=(256,1,1) block=(512,1,1) lds={LDS_BYTES}
.amdgcn_target "amdgcn-amd-amdhsa--gfx950"
.text
.globl {KN}
.p2align 8
.type {KN},@function
{KN}:
"""
    tail = f"""
.section .rodata,"a"
.p2align 6
.amdhsa_kernel {KN}
  .amdhsa_next_free_vgpr 256
  .amdhsa_next_free_sgpr 102
  .amdhsa_accum_offset 256
  .amdhsa_group_segment_fixed_size 0
  .amdhsa_kernarg_size 104
  .amdhsa_user_sgpr_count 2
  .amdhsa_user_sgpr_kernarg_segment_ptr 1
  .amdhsa_system_sgpr_workgroup_id_x 1
.end_amdhsa_kernel
"""
    return head + "\n".join(lines) + tail


if __name__ == "__main__":
    out = sys.argv[1] if len(sys.argv) > 1 else "k.s"
    open(out, "w").write(gen(dbg=len(sys.argv) > 2))
```
